```python
import torch

def _softmax(x, axis=-1):
    return torch.softmax(x, dim=axis)

def _gelu(x):
    return torch.nn.functional.gelu(x, approximate='tanh')

def _silu(x):
    return torch.nn.functional.silu(x)

def _sigmoid(x):
    return torch.sigmoid(x)

def _layernorm(x, axis=-1, eps=1e-05):
    m = x.mean(dim=axis, keepdim=True)
    v = x.var(dim=axis, keepdim=True, unbiased=False)
    return (x - m) / torch.sqrt(v + eps)

def _scatter_add(tgt, idx, src, axis=0):
    return tgt.clone().index_add_(axis, idx, src)

def _segment_sum(src, seg, n):
    out = torch.zeros((n,) + src.shape[1:], dtype=src.dtype)
    return out.index_add_(0, seg, src)

def _pad(x, pw):
    flat = tuple((v for pair in reversed(pw) for v in pair))
    return torch.nn.functional.pad(x, flat)
kernel_name = 'adaLN_cond__sliding_block_cached__dense_activation_relu__prompt'

def setup_inputs():

    _w = lambda a: (lambda t: t.to(torch.bfloat16) if t.is_floating_point() else t)(torch.as_tensor(a))

    def _A_setup():
        B, Sq, D = (1, 2048, 448)
        Hq, Hkv, Sk, Dh = (16, 8, 2048, 256)
        assert Hq % Hkv == 0, (Hq, Hkv)
        return {'x': _w((lambda *s: torch.randn(*s, dtype=torch.bfloat16) * 0.05)(B, Sq, D)), 'k_cache': _w((lambda *s: torch.randn(*s, dtype=torch.bfloat16) * 3.2)(B, Hkv, Sk, Dh)), 'v_cache': _w((lambda *s: torch.randn(*s, dtype=torch.bfloat16) * 0.4)(B, Hkv, Sk, Dh)), 'wq': _w((lambda *s: torch.randn(*s, dtype=torch.bfloat16) * 3.2)(D, Hq * Dh) * D ** (-0.5)), 'wo': _w((lambda *s: torch.randn(*s, dtype=torch.bfloat16) * 0.4)(Hq * Dh, D) * (Hq * Dh) ** (-0.5))}
    _A_in = _A_setup()

    def _B_setup():
        B, S, D, Dff = (1, 2048, 448, 1792)
        return {'x': _w((lambda *s: torch.randn(*s, dtype=torch.bfloat16) * 0.05)(B, S, D)), 'w1': _w((lambda *s: torch.randn(*s, dtype=torch.bfloat16) * 0.05)(D, Dff)), 'w2': _w((lambda *s: torch.randn(*s, dtype=torch.bfloat16) * 0.05)(Dff, D))}
    _B_in = _B_setup()
    return {'A_x': _A_in['x'], 'A_k_cache': _A_in['k_cache'], 'A_v_cache': _A_in['v_cache'], 'A_wq': _A_in['wq'], 'A_wo': _A_in['wo'], 'B_x': _B_in['x'], 'B_w1': _B_in['w1'], 'B_w2': _B_in['w2'], 'c': _w((lambda *s: torch.randn(*s, dtype=torch.bfloat16) * 0.1)(1, 448) * 8.0), 'w_mod': _w((lambda *s: torch.randn(*s, dtype=torch.bfloat16) * 0.1)(448, 6 * 448) * 448 ** (-0.5) * 8.0)}

def reference(A_x, A_k_cache, A_v_cache, A_wq, A_wo, B_x, B_w1, B_w2, c, w_mod):

    def _A_ref(x, k_cache, v_cache, wq, wo):
        B, Sq, D = x.shape
        Hq, Dh = (16, 256)
        Hkv, Sk = (k_cache.shape[1], k_cache.shape[2])
        W = min(4096, max(256, Sk // 4))
        rep = Hq // Hkv
        q = (lambda x, *d: x.permute(*d))((x @ wq).reshape(B, Sq, Hq, Dh), 0, 2, 1, 3)
        k = (lambda x, n, axis: torch.repeat_interleave(x, n, dim=axis))(k_cache[:, :, Sk - W:, :], rep, axis=1)
        v = (lambda x, n, axis: torch.repeat_interleave(x, n, dim=axis))(v_cache[:, :, Sk - W:, :], rep, axis=1)
        scores = torch.einsum('bhqd,bhkd->bhqk', q, k) * Dh ** (-0.5)
        p = _softmax(scores, axis=-1)
        o = torch.einsum('bhqk,bhkd->bhqd', p, v)
        return (lambda x, *d: x.permute(*d))(o, 0, 2, 1, 3).reshape(B, Sq, Hq * Dh) @ wo

    def _B_ref(x, w1, w2):
        h = torch.einsum('bsd,df->bsf', x, w1)
        zero = torch.zeros_like(h)
        h = torch.maximum(h, zero)
        return torch.einsum('bsf,fd->bsd', h, w2)
    x = A_x
    mod = (_silu(c) @ w_mod).reshape(c.shape[0], 6, 1, -1)
    sa, ca, ga, sb, cb, gb = (mod[:, 0].clone(), mod[:, 1].clone(), mod[:, 2].clone(), mod[:, 3].clone(), mod[:, 4].clone(), mod[:, 5].clone())
    h = _layernorm(x, axis=-1) * (1 + ca) + sa
    x = x + ga * _A_ref(h, A_k_cache, A_v_cache, A_wq, A_wo)
    h = _layernorm(x, axis=-1) * (1 + cb) + sb
    x = x + gb * _B_ref(h, B_w1, B_w2)
    return x
```

```python
import re

class Asm:
    def __init__(self):
        self.lines = []
    def __call__(self, s):
        for ln in s.split("\n"):
            ln = ln.strip()
            if ln:
                self.lines.append(ln)
    def label(self, name):
        self.lines.append(name + ":")
    def comment(self, s):
        self.lines.append("; " + s)
    def extend(self, lst):
        for x in lst:
            self(x)
    def text(self):
        out = []
        for ln in self.lines:
            if ln.endswith(":") or ln.startswith(".") or ln.startswith(";"):
                out.append(ln)
            else:
                out.append("    " + ln)
        return "\n".join(out) + "\n"

def v(i, n=1): return f"v{i}" if n == 1 else f"v[{i}:{i+n-1}]"
def a(i, n=1): return f"a{i}" if n == 1 else f"a[{i}:{i+n-1}]"
def s(i, n=1): return f"s{i}" if n == 1 else f"s[{i}:{i+n-1}]"

TRANS = ("v_exp_f32", "v_log_f32", "v_rcp_f32", "v_rsq_f32", "v_sqrt_f32", "v_sin_f32", "v_cos_f32")

def cost(ins):
    op = ins.split()[0]
    if op in TRANS: return 2
    if op == "s_nop": return int(ins.split()[1]) + 1
    return 1

class Op:
    def __init__(self, text, early=-1, late=None, lds=False):
        self.text = text if isinstance(text, list) else [text]
        self.early = early
        self.late = late
        self.lds = lds
        self.cost = sum(cost(t) for t in self.text)

def schedule(mfmas, reads, streams, tail=6, cap=2, lag=6, head_cap=2, read_start=-1):
    M = len(mfmas)
    out = []
    issued = []
    covered = 0
    ri = 0
    nread = len(reads)
    last_gap = M - 1 - tail
    first_use = {}
    for k, (t, need) in enumerate(mfmas):
        for r in need:
            first_use.setdefault(r, k)
    def target(i):
        if nread <= 1: return read_start
        t = read_start + (i * (last_gap - read_start)) // (nread - 1)
        rid = reads[i][0]
        if rid in first_use:
            t = min(t, first_use[rid] - 1 - lag)
        return max(t, reads[i][2], read_start)
    pos = [0] * len(streams)
    def starget(si, i):
        st = streams[si]
        lo = max(st[0].early, -1)
        hi = st[-1].late if st[-1].late is not None else M - 1
        n = len(st)
        t = lo + (i * (hi - lo)) // max(1, n - 1) if n > 1 else lo
        if st[i].late is not None: t = min(t, st[i].late)
        return max(t, st[i].early)
    for gap in range(-1, M):
        room = head_cap if gap == -1 else cap
        nxt = gap + 1
        need_wait = False
        if nxt < M:
            need = mfmas[nxt][1]
            idx = [i for i, (rid, g) in enumerate(issued) if rid in need]
            missing = [r for r in need if r not in [x[0] for x in issued]]
            if missing or (idx and max(idx) >= covered): need_wait = True
        if need_wait: room -= 1
        while True:
            placed = False
            if ri < nread and reads[ri][2] <= gap:
                forced = nxt < M and any((r in mfmas[nxt][1]) for r in [x[0] for x in reads[ri:]])
                if forced or (room > 0 and target(ri) <= gap):
                    out.append(reads[ri][1]); issued.append((reads[ri][0], gap)); ri += 1; room -= 1; placed = True
                    continue
            best = None
            for si, st in enumerate(streams):
                if pos[si] < len(st):
                    op = st[pos[si]]
                    tg = starget(si, pos[si])
                    if op.early > gap: continue
                    must = (op.late is not None and op.late <= gap) or gap == M - 1
                    if must or (tg <= gap and op.cost <= room):
                        key = (0 if must else 1, tg)
                        if best is None or key < best[0]: best = (key, si)
            if best is not None:
                si = best[1]; op = streams[si][pos[si]]
                out.extend(op.text); room -= op.cost; pos[si] += 1
                if op.lds:
                    for t in op.text:
                        if t.startswith("ds_"): issued.append((None, gap))
                placed = True
            if not placed: break
        if gap == M - 1:
            while ri < nread:
                out.append(reads[ri][1]); issued.append((reads[ri][0], gap)); ri += 1
        if nxt < M:
            need = mfmas[nxt][1]
            idx = [i for i, (rid, g) in enumerate(issued) if rid in need]
            if idx and max(idx) >= covered:
                want = max(idx) + 1
                while want < len(issued) and issued[want][1] <= gap - lag: want += 1
                n = len(issued) - want
                if n > 15:
                    n = 15; want = len(issued) - 15
                out.append(f"s_waitcnt lgkmcnt({n})")
                covered = want
            out.append(mfmas[nxt][0])
    for si, st in enumerate(streams):
        assert pos[si] == len(st), ("unplaced", st[pos[si]].text)
    return out

_reg = re.compile(r"\b([vas])(\d+)\b|\b([vas])\[(\d+):(\d+)\]")
def regs_of(tok):
    out = set()
    for m in _reg.finditer(tok):
        if m.group(1): out.add((m.group(1), int(m.group(2))))
        else:
            for i in range(int(m.group(4)), int(m.group(5)) + 1): out.add((m.group(3), i))
    if re.search(r"\bvcc\b", tok): out |= {("s", 106), ("s", 107)}
    if re.search(r"\bm0\b", tok): out.add(("s", 124))
    if re.search(r"\bexec\b", tok): out |= {("s", 126), ("s", 127)}
    return out

def parse(ins):
    ins = ins.split(";")[0].strip()
    parts = ins.split(None, 1)
    op = parts[0]
    ops = [x.strip() for x in parts[1].split(",")] if len(parts) > 1 else []
    kind = None; W = set(); R = set(); C = set(); AB = set()
    if op.startswith("v_mfma"):
        kind = "mfma"; W = regs_of(ops[0]); AB = regs_of(ops[1]) | regs_of(ops[2]); C = regs_of(ops[3]); R = AB | C
    elif op.startswith("v_"):
        kind = "valu"
        if op.startswith("v_cmp"):
            W = regs_of(ops[0]); R = set().union(*[regs_of(o) for o in ops[1:]])
            if op.startswith("v_cmpx"): W |= {("s", 126), ("s", 127)}
        elif op.startswith("v_permlane") and "swap" in op:
            W = regs_of(ops[0]) | regs_of(ops[1]); R = set(W)
        else:
            W = regs_of(ops[0]); R = set().union(*[regs_of(o) for o in ops[1:]]) if len(ops) > 1 else set()
            if "_co_" in op: W |= regs_of(ops[1]);
            if op.startswith(("v_fmac", "v_pk_fmac", "v_writelane")) or "dpp" in op or "row_" in ins or "quad_perm" in ins: R |= regs_of(ops[0])
    elif op.startswith("ds_"):
        kind = "ds"
        if "read" in op or "permute" in op or "swizzle" in op:
            W = regs_of(ops[0]); R = set().union(*[regs_of(o) for o in ops[1:]])
        else:
            R = set().union(*[regs_of(o) for o in ops])
    elif op.startswith(("buffer_", "global_")):
        kind = "vmem"
        if "load" in op and not ins.rstrip().endswith("lds"):
            W = regs_of(ops[0]); R = set().union(*[regs_of(o) for o in ops[1:]])
        else:
            R = set().union(*[regs_of(o) for o in ops])
            if ins.rstrip().endswith("lds"): R.add(("s", 124))
    elif op.startswith("s_"):
        kind = "salu"
        if op.startswith(("s_cmp", "s_cbranch", "s_branch", "s_waitcnt", "s_nop", "s_barrier", "s_endpgm", "s_setprio", "s_sleep", "s_bitcmp")):
            R = set().union(*[regs_of(o) for o in ops]) if ops else set()
        else:
            W = regs_of(ops[0]); R = set().union(*[regs_of(o) for o in ops[1:]]) if len(ops) > 1 else set()
            if "saveexec" in op: W |= {("s", 126), ("s", 127)}
    return dict(op=op, kind=kind, W=W, R=R, C=C, AB=AB, text=ins)

def is_ins(l):
    return not (l.endswith(":") or l.startswith(".") or l.startswith(";"))

_pc = {}
def parse_c(l):
    if l not in _pc: _pc[l] = parse(l)
    return _pc[l]

def states(p):
    return int(p["text"].split()[1], 0) + 1 if p["op"] == "s_nop" else 1

def pair_need(p, q):
    need = 0; why = ""
    vW = {r for r in p["W"] if r[0] in "va"}
    sW = {r for r in p["W"] if r[0] == "s"}
    if p["kind"] == "valu":
        if q["kind"] == "mfma" and vW & q["R"]: need, why = 2, "valu->mfma"
        if q["kind"] == "valu":
            isdpp = "row_" in q["text"] or "quad_perm" in q["text"]
            if isdpp and vW & q["R"]: need, why = max(need, 2), "valu->dpp"
            if q["op"].startswith("v_permlane") and vW & q["R"]: need, why = max(need, 2), "valu->permlane"
            if q["op"].startswith(("v_readlane", "v_readfirstlane")) and vW & q["R"]: need, why = max(need, 1), "valu->readlane"
            if p["op"] in TRANS and vW & q["R"]: need, why = max(need, 1), "trans->valu"
            if sW & q["R"]: need, why = max(need, 2), "valu sgpr->valu"
            if isdpp and ("s", 126) in sW: need, why = max(need, 5), "valu exec->dpp"
        if q["kind"] == "vmem" and sW & q["R"]: need, why = max(need, 5), "valu sgpr->vmem"
        if q["kind"] == "salu" and sW & q["R"]: need, why = max(need, 1), "valu sgpr->salu (pad)"
        if q["kind"] == "mfma" and ("s", 126) in sW: need, why = max(need, 4), "valu exec->mfma"
    if p["kind"] == "mfma":
        passes = 4 if "16x16x32" in p["op"] else 8
        nv = {4: 8, 8: 12}[passes]
        if q["kind"] in ("valu", "ds", "vmem") and (p["W"] & (q["R"] | q["W"])): need, why = nv, "mfma D->valu/mem"
        if q["kind"] == "mfma":
            if p["W"] & q["AB"]: need, why = nv, "mfma D->mfma AB"
            if p["W"] & q["C"] and p["W"] != q["C"]: need, why = max(need, {4: 6, 8: 10}[passes]), "mfma D->C partial"
        if q["kind"] == "valu" and p["C"] & q["W"]: need, why = max(need, {4: 3, 8: 7}[passes]), "mfma C WAR"
    if p["kind"] == "salu" and ("s", 124) in p["W"] and q["kind"] == "vmem" and ("s", 124) in q["R"]:
        need, why = 1, "m0->dma"
    if p["kind"] == "vmem" and "store" in p["op"] and ("x4" in p["op"] or "x3" in p["op"]):
        data = regs_of(p["text"].split(None, 1)[1].split(",")[0])
        if data & q["W"]: need, why = (2 if q["kind"] == "valu" else 1), "store data WAR"
    return need, why

def missing_states(prev, q):
    dist = 0; miss = 0; w = ""
    for p in reversed(prev[-24:]):
        need, why = pair_need(p, q)
        if need - dist > miss: miss = need - dist; w = f"{why}: [{p['text']}] -> [{q['text']}]"
        dist += states(p)
        if dist >= 20: break
    return miss, w

def check_hazards(lines, name=""):
    ins = []
    probs = []
    for l in lines:
        if not is_ins(l): continue
        q = parse_c(l)
        m, w = missing_states(ins, q)
        if m: probs.append(f"{name}: missing {m}: {w}")
        ins.append(q)
    return probs

def fix_hazards(lines, verbose=False):
    out = []; ins = []; added = 0
    for l in lines:
        if not is_ins(l):
            out.append(l); continue
        q = parse_c(l)
        m, w = missing_states(ins, q)
        if m:
            if verbose: print("nop", m, w)
            added += m
            t = f"s_nop {m-1}"
            out.append(t); ins.append(parse_c(t))
        out.append(l); ins.append(q)
    return out, added
```

```python
from dsl import cost, check_hazards, parse, TRANS, regs_of

class Op:
    def __init__(self, text, early=-1, target=None, late=None, kind=None, id=None, tag=None, need=None, vneed=None):
        self.text = text if isinstance(text, list) else [text]
        self.early = early; self.target = target; self.late = late
        self.kind = kind
        self.id = id
        self.tag = tag
        self.need = need
        self.vneed = vneed
        self.cost = sum(cost(t) for t in self.text)

def spread(ops, lo, hi):
    n = len(ops)
    tot = sum(o.cost for o in ops)
    acc = 0
    for o in ops:
        t = lo + (acc * (hi - lo + 1)) // max(1, tot)
        acc += o.cost
        if o.target is None: o.target = t
    return ops

class Sched:
    def __init__(self, vm=None, cap=2, lag=5):
        self.vm = list(vm or [])
        self.vm_done = 0
        self.cap = cap; self.lag = lag
    def vwait(self, tag):
        idx = [i for i, t in enumerate(self.vm) if t == tag]
        if not idx or max(idx) < self.vm_done: return None
        n = len(self.vm) - (max(idx) + 1)
        assert n <= 63
        self.vm_done = max(idx) + 1
        return n
    def run(self, mf, streams):
        M = len(mf)
        out = []
        lds = []; cov = 0
        for st in streams:
            for i in range(len(st) - 2, -1, -1):
                if st[i+1].late is not None:
                    st[i].late = st[i+1].late if st[i].late is None else min(st[i].late, st[i+1].late)
            for i, o in enumerate(st):
                if o.target is None: o.target = o.early
                if o.late is None: o.late = M - 1
                o.target = max(min(o.target, o.late), o.early)
                assert o.early <= o.late, ("bad window", o.text, o.early, o.late)
        pos = [0] * len(streams)
        idpos = {}
        over = 0
        def lwait(need, gap, extend=True):
            nonlocal cov
            for r in need: assert r in idpos, ("read not issued", r, gap)
            if not need: return None
            want = max(idpos[r] for r in need) + 1
            if want <= cov: return None
            if extend:
                while want < len(lds) and lds[want] <= gap - self.lag: want += 1
            n = len(lds) - want
            if n > 15: n = 15; want = len(lds) - 15
            cov = want
            return n
        for gap in range(-1, M):
            room = self.cap
            nxt = gap + 1
            if nxt < M:
                need = mf[nxt][1]
                if any((r not in idpos) or idpos[r] >= cov for r in need): room -= 1
            while True:
                best = None
                for si, st in enumerate(streams):
                    if pos[si] >= len(st): continue
                    o = st[pos[si]]
                    if o.early > gap: continue
                    must = o.late <= gap
                    if must or (o.target <= gap and o.cost <= room):
                        key = (0 if o.kind == 'bar' else 1, 0 if must else 1, o.target, si)
                        if best is None or key < best[0]: best = (key, si)
                if best is None: break
                si = best[1]; o = streams[si][pos[si]]; pos[si] += 1
                if o.kind == 'bar':
                    w = []
                    if o.tag is not None:
                        n = self.vwait(o.tag)
                        if n is not None: w.append(f"vmcnt({n})")
                    if o.need is None:
                        if cov < len(lds): w.append("lgkmcnt(0)"); cov = len(lds)
                    else:
                        n = lwait(o.need, gap, extend=False)
                        if n is not None: w.append(f"lgkmcnt({n})")
                    if w: out.append("s_waitcnt " + " ".join(w)); room -= 1
                    out.append("s_barrier"); room -= 1
                    continue
                w = []
                if o.need:
                    n = lwait(o.need, gap)
                    if n is not None: w.append(f"lgkmcnt({n})")
                if o.vneed is not None:
                    n = self.vwait(o.vneed)
                    if n is not None: w.append(f"vmcnt({n})")
                if w: out.append("s_waitcnt " + " ".join(w)); room -= 1
                for t in o.text:
                    out.append(t)
                    if t.startswith("ds_"):
                        lds.append(gap)
                        if o.id is not None: idpos[o.id] = len(lds) - 1
                    if t.startswith(("buffer_", "global_")): self.vm.append(o.tag)
                room -= o.cost
            if room < 0: over += -room
            if nxt < M:
                w = []
                n = lwait(mf[nxt][1], gap)
                if n is not None: w.append(f"lgkmcnt({n})")
                if len(mf[nxt]) > 2 and mf[nxt][2] is not None:
                    n = self.vwait(mf[nxt][2])
                    if n is not None: w.append(f"vmcnt({n})")
                if w: out.append("s_waitcnt " + " ".join(w))
                out.append(mf[nxt][0])
        for si, st in enumerate(streams):
            assert pos[si] == len(st), ("unplaced", st[pos[si]].text, st[pos[si]].early)
        self.over = over
        self.lds_pending = len(lds) - cov
        return out
```

```python
import sys, struct, math
sys.path.insert(0, 'gen')
from dsl import *
from sched import Op, Sched, spread

def f32(x): return "0x%08x" % struct.unpack("<I", struct.pack("<f", x))[0]

WS_MOD = 0
WS_X1 = 0x10000
WS_H2 = 0x200000
WS_P1 = 0x400000
WS_P2 = 0x1200000
WS_END = 0x2000000
SLOT = 33792
HB = 3 * SLOT
EX = 163840 - 65536
FLAG = 2080
DS = [0, 1032, 2112, 3144]
DP = [0, 1056, 2112, 3168]
QSCALE = math.log2(math.e) / 16.0
PBIAS = 96.0
LTHR = 2.0 ** 30
MF = "v_mfma_f32_16x16x32_bf16"
OOB = 0x40000000

CFG = dict(R=4, tail=5, lag=5, stamps=False, st_flags="sc1")

def header(k, name):
    k(".text"); k(f".globl {name}"); k(".p2align 8"); k(f".type {name},@function"); k.label(name)

def descriptor(name, vgpr, accum, sgpr=102):
    return f""".amdhsa_kernel {name}
  .amdhsa_next_free_vgpr {vgpr}
  .amdhsa_next_free_sgpr {sgpr}
  .amdhsa_accum_offset {accum}
  .amdhsa_group_segment_fixed_size 0
  .amdhsa_kernarg_size 104
  .amdhsa_user_sgpr_count 2
  .amdhsa_user_sgpr_kernarg_segment_ptr 1
  .amdhsa_system_sgpr_workgroup_id_x 1
.end_amdhsa_kernel
"""

def load_args(k):
    k("s_load_dwordx16 s[36:51], s[0:1], 0")
    k("s_load_dwordx8 s[52:59], s[0:1], 64")
    k("s_load_dwordx2 s[60:61], s[0:1], 96")
ARG = dict(x=36, k=38, v=40, wq=42, wo=44, w1=48, w2=50, c=52, wmod=54, out=56, dbg=58, ws=60)

def srd(k, d, arg, size, add_sgpr=None, add_imm=0):
    p = ARG[arg]
    if add_sgpr is not None:
        k(f"s_add_u32 s{d}, s{p}, s{add_sgpr}"); k(f"s_addc_u32 s{d+1}, s{p+1}, 0")
    else:
        k(f"s_mov_b32 s{d}, s{p}"); k(f"s_mov_b32 s{d+1}, s{p+1}")
    if add_imm > 0:
        k(f"s_add_u32 s{d}, s{d}, {add_imm}"); k(f"s_addc_u32 s{d+1}, s{d+1}, 0")
    elif add_imm < 0:
        k(f"s_sub_u32 s{d}, s{d}, {-add_imm}"); k(f"s_subb_u32 s{d+1}, s{d+1}, 0")
    k(f"s_mov_b32 s{d+2}, {size}"); k(f"s_mov_b32 s{d+3}, 0x20000")

def stamp(k, idx, sbase=84):
    if CFG['stamps']:
        k("s_memtime s[82:83]"); k("s_waitcnt lgkmcnt(0)"); k(f"s_mov_b32 s{sbase+idx}, s82")

def gen_mod():
    k = Asm(); name = "k_mod_kernel"
    header(k, name)
    k("s_cmp_ge_u32 s2, 256"); k("s_cbranch_scc1 L_mod_end")
    load_args(k)
    k("s_and_b32 s62, s2, 7"); k("s_lshr_b32 s63, s2, 3")
    k("v_lshlrev_b32 v1, 7, v0")
    k(f"v_mov_b32 v2, {OOB}")
    k("s_waitcnt lgkmcnt(0)")
    srd(k, 8, 'wmod', 448 * 5376); srd(k, 12, 'c', 896); srd(k, 16, 'ws', 10752)
    k("s_cmp_ge_u32 s2, 84"); k("s_cbranch_scc1 L_mod_touch")
    k("v_lshrrev_b32 v3, 2, v0")
    k("v_mul_u32_u24 v4, 5376, v3")
    k("v_and_b32 v5, 3, v0"); k("v_lshlrev_b32 v5, 4, v5"); k("v_add_u32 v4, v4, v5")
    k("s_lshl_b32 s3, s2, 6")
    k("v_lshlrev_b32 v6, 1, v3")
    for n in range(7):
        k(f"buffer_load_ushort v{16+n}, v6, s[12:15], 0 offen offset:{128*n}")
    for n in range(7):
        k(f"buffer_load_dwordx4 v[{32+4*n}:{35+4*n}], v4, s[8:11], s3 offen")
        if n < 6: k(f"s_add_u32 s3, s3, {64*5376}")
    k.label("L_mod_touch")
    srd(k, 20, 'wq', 448 * 8192); srd(k, 24, 'k', 8 << 20); srd(k, 28, 'v', 8 << 20); srd(k, 32, 'wo', 4096 * 896)
    srd(k, 64, 'x', 2048 * 896)
    k("v_cmp_gt_u32 vcc, 112, v0")
    k("v_lshrrev_b32 v7, 3, v0"); k("v_lshlrev_b32 v7, 13, v7")
    k("v_and_b32 v8, 7, v0"); k("v_lshlrev_b32 v8, 7, v8"); k("v_add_u32 v7, v7, v8")
    k("v_cndmask_b32 v7, v2, v7, vcc")
    k("v_cndmask_b32 v8, v2, v1, vcc")
    k("v_cmp_gt_u32 vcc, 64, v0")
    k(f"s_mul_i32 s68, s63, {14*8192}"); k("s_lshl_b32 s69, s62, 10"); k("s_add_u32 s68, s68, s69")
    k("v_cndmask_b32 v9, v2, v1, vcc")
    k("buffer_load_dword v10, v7, s[20:23], s68 offen")
    k("s_lshl_b32 s68, s62, 20"); k("s_lshl_b32 s69, s63, 13"); k("s_add_u32 s68, s68, s69"); k(f"s_add_u32 s68, s68, {1536*512}")
    k("buffer_load_dword v11, v9, s[24:27], s68 offen")
    k("buffer_load_dword v12, v9, s[28:31], s68 offen")
    k(f"s_mul_i32 s68, s63, {57344}")
    k("buffer_load_dword v13, v1, s[64:67], s68 offen")
    k("v_cmp_gt_u32 vcc, 0xc0, v0")
    k("s_add_u32 s68, s68, 32768")
    k("v_cndmask_b32 v14, v2, v1, vcc")
    k("buffer_load_dword v14, v14, s[64:67], s68 offen")
    k(f"s_mul_i32 s68, s62, {458752}"); k(f"s_mul_i32 s69, s63, {112*128}"); k("s_add_u32 s68, s68, s69")
    k("buffer_load_dword v15, v8, s[32:35], s68 offen")
    k("s_getpc_b64 s[72:73]")
    k.label("L_mod_pc")
    k("s_add_u32 s72, s72, k_attn_kernel-L_mod_pc"); k("s_addc_u32 s73, s73, 0")
    k("s_mov_b32 s74, L_attn_fast_end-k_attn_kernel"); k("s_mov_b32 s75, 0x20000")
    k("v_cmp_gt_u32 vcc, 16, v0")
    k("s_lshl_b32 s68, s63, 11")
    k("v_cndmask_b32 v9, v2, v1, vcc")
    k("buffer_load_dword v9, v9, s[72:75], s68 offen")
    k("s_cmp_ge_u32 s2, 84"); k("s_cbranch_scc1 L_mod_done")
    k("s_waitcnt vmcnt(14)")
    k(f"s_mov_b32 s70, {f32(-math.log2(math.e))}")
    k("s_mov_b32 s71, 0xffff0000")
    for n in range(7): k(f"v_lshlrev_b32 v{16+n}, 16, v{16+n}")
    for n in range(7): k(f"v_mul_f32 v{24+n}, s70, v{16+n}")
    for n in range(7): k(f"v_exp_f32 v{24+n}, v{24+n}")
    for n in range(7): k(f"v_add_f32 v{24+n}, 1.0, v{24+n}")
    for n in range(7): k(f"v_rcp_f32 v{24+n}, v{24+n}")
    for n in range(7): k(f"v_mul_f32 v{16+n}, v{16+n}, v{24+n}")
    for n in range(7): k(f"v_cvt_pk_bf16_f32 v{16+n}, v{16+n}, v{16+n}")
    for n in range(7): k(f"v_lshlrev_b32 v{16+n}, 16, v{16+n}")
    for j in range(8): k(f"v_mov_b32 v{64+j}, 0")
    k("s_waitcnt vmcnt(7)")
    for n in range(7):
        for j in range(4):
            k(f"v_lshlrev_b32 v72, 16, v{32+4*n+j}"); k(f"v_and_b32 v73, s71, v{32+4*n+j}")
            k(f"v_fmac_f32 v{64+2*j}, v72, v{16+n}"); k(f"v_fmac_f32 v{65+2*j}, v73, v{16+n}")
    for sh in (4, 8):
        for j in range(8): k(f"v_add_f32_dpp v{64+j}, v{64+j}, v{64+j} row_ror:{sh} row_mask:0xf bank_mask:0xf")
    k("v_lshrrev_b32 v3, 4, v0"); k("v_lshlrev_b32 v3, 7, v3"); k("v_lshl_add_u32 v3, v5, 1, v3")
    k("v_and_b32 v4, 12, v0"); k("v_cmp_eq_u32 vcc, 0, v4")
    k("s_and_saveexec_b64 s[76:77], vcc")
    k("ds_write_b128 v3, v[64:67]"); k("ds_write_b128 v3, v[68:71] offset:16")
    k("s_mov_b64 exec, s[76:77]")
    k("s_waitcnt lgkmcnt(0)"); k("s_barrier")
    k("v_and_b32 v3, 31, v0"); k("v_lshlrev_b32 v3, 2, v3")
    for i in range(16): k(f"ds_read_b32 v{16+i}, v3 offset:{128*i}")
    k("s_mul_i32 s78, s2, 4682"); k("s_lshr_b32 s78, s78, 16")
    k("s_cmp_eq_u32 s78, 1"); k("s_cselect_b32 s79, 1.0, 0")
    k("s_cmp_eq_u32 s78, 4"); k("s_cselect_b32 s79, 1.0, s79")
    k("s_cmp_lt_u32 s78, 2"); k(f"s_cselect_b32 s80, {f32(QSCALE)}, 1.0")
    k("s_waitcnt lgkmcnt(0)")
    for st in (8, 4, 2, 1):
        for i in range(st): k(f"v_add_f32 v{16+i}, v{16+i}, v{16+i+st}")
    k("v_cvt_pk_bf16_f32 v16, v16, v16"); k("v_lshlrev_b32 v16, 16, v16")
    k("v_add_f32 v16, s79, v16")
    k("v_cvt_pk_bf16_f32 v16, v16, v16"); k("v_lshlrev_b32 v16, 16, v16")
    k("v_mul_f32 v16, s80, v16")
    k("v_cmp_gt_u32 vcc, 32, v0")
    k("s_lshl_b32 s3, s2, 7")
    k("v_cndmask_b32 v3, v2, v3, vcc")
    k("buffer_store_dword v16, v3, s[16:19], s3 offen")
    k.label("L_mod_done")
    k("s_waitcnt vmcnt(0)")
    k.label("L_mod_end")
    k("s_endpgm")
    return k, descriptor(name, 80, 80)

def wave_ids(k):
    k("v_lshrrev_b32 v1, 6, v0"); k("v_and_b32 v0, 63, v0")
    k("v_readfirstlane_b32 s64, v1")
    k("s_lshr_b32 s65, s64, 1"); k("s_and_b32 s66, s64, 1")

def addr_kappa(k, dst, t1, t2):
    k(f"v_bfe_u32 v{t1}, v0, 2, 3"); k(f"v_lshlrev_b32 v{dst}, 10, v{t1}")
    k(f"v_lshrrev_b32 v{t2}, 1, v{t1}"); k(f"v_lshl_add_u32 v{dst}, v{t2}, 6, v{dst}")
    k(f"v_and_b32 v{t2}, 1, v{t1}"); k(f"v_lshl_add_u32 v{dst}, v{t2}, 3, v{dst}")

def dma_ops(slot, groups, tag, early, late):
    ops = []
    for (sm, mi, sr, sb, si, vr, dl, st) in groups:
        ops.append(Op(f"s_add_u32 s{st}, s{sb}, {si}", early=early, late=late))
        first = [f"s_add_u32 m0, s{sm}, {slot*SLOT+mi}"]
        ops.append(Op(first, early=early, late=late))
        for q in range(4):
            off = f" offset:{dl[q]}" if dl[q] else ""
            ops.append(Op(f"buffer_load_dwordx4 v{vr[q]}, s[{sr}:{sr+3}], s{st} offen{off} lds", early=early, late=late, kind='vmem', tag=tag))
    return ops

class Seq:
    def __init__(self, nbuf=16):
        self.mf = []; self.reads = []; self.nfrag = 0; self.nbuf = nbuf
        self.lastuse = {}; self.stage_first = {}; self.stage_reads = {}
    def frag(self, stage, rd_fn, mfs):
        b = self.nfrag % self.nbuf; reg = 4 * b
        fid = ('f', self.nfrag)
        first = len(self.mf)
        self.stage_first.setdefault(stage, first)
        rds = rd_fn(reg)
        ids = []
        for i, t in enumerate(rds):
            o = Op(t, early=self.lastuse.get(b, -1), late=first - 1, kind='lds', id=fid + (i,))
            o.first = first; o.stage = stage
            self.reads.append(o); ids.append(o.id)
            self.stage_reads.setdefault(stage, []).append(o)
        for fn in mfs:
            r = fn(reg)
            self.mf.append((r[0], set(ids) | set(r[1]), r[2] if len(r) > 2 else None))
        self.lastuse[b] = len(self.mf) - 1
        self.nfrag += 1
        return first
    def plain(self, text, need=()):
        self.mf.append((text, set(need), None)); return len(self.mf) - 1
    def finish(self, stages):
        R, tail, lag = CFG['R'], CFG['tail'], CFG['lag']
        M = len(self.mf)
        B = {}
        for sg in stages: B[sg] = max(-1, self.stage_first[sg] - 2 * R - 1)
        for i, sg in enumerate(stages):
            hi = (B[stages[i+1]] - tail) if i + 1 < len(stages) else M - 1
            rs = self.stage_reads[sg]
            for o in rs:
                o.early = max(o.early, B[sg])
                o.late = max(min(o.late, (B[stages[i+1]] - 1) if i + 1 < len(stages) else M - 1), o.early)
            spread(rs, B[sg], hi)
            for o in rs:
                o.target = max(o.early, min(o.target, o.first - 1 - lag))
        return B

V_LQ, V_LQ2, V_LK, V_LK2, V_LV, V_LV2, V_LO, V_LO2, V_LH, V_EXW, V_EXR, V_ST = range(2, 14)
V_DQ = [14, 15, 16, 17]; V_DKV = [18, 19, 20, 21]; V_DO = [22, 23, 24, 25]
V_T = 32
V_S = 64; V_P = 96; V_NEG = 112; V_ACC = 128
A_Q = 64; A_H = 128; A_L = 144; A_ONE = 152; A_OB = 128
S_WQ, S_K, S_V, S_WO, S_X, S_WS = 8, 12, 16, 20, 24, 28
S_M8, S_M4, S_QB, S_KB, S_OB, S_T0, S_T1, S_ST, S_MODE = 72, 73, 74, 75, 76, 77, 78, 79, 81

def rd_addr(slot, v1, v2, imm):
    if slot < 2: return f"v{v1} offset:{slot*SLOT+imm}"
    return f"v{v2} offset:{imm}"

def attn_dma(sg, early, late):
    slot = sg % 3
    if sg < 14:
        gr = [(S_M8, 0, S_WQ, S_QB, sg * 32 * 8192, V_DQ, DS, S_T0), (S_M8, 4224, S_WQ, S_QB, sg * 32 * 8192 + 65536, V_DQ, DS, S_T1)]
    elif sg < 30:
        n = sg - 14
        lo = (S_K, 0) if n == 0 else ((S_K, n + 1) if n < 15 else (S_V, 15))
        up = (S_K, 1) if n == 0 else (S_V, n - 1)
        gr = [(S_M4, 0, lo[0], S_KB, lo[1] * 16384, V_DKV, DP, S_T0), (S_M4, 16896, up[0], S_KB, up[1] * 16384, V_DKV, DP, S_T1)]
    else:
        gam, eta = (sg - 30) >> 1, (sg - 30) & 1
        o = eta * 256 * 896 + 128 * gam
        gr = [(S_M8, 0, S_WO, S_OB, o, V_DO, DS, S_T0), (S_M8, 4224, S_WO, S_OB, o + 4 * 896, V_DO, DS, S_T1)]
    return dma_ops(slot, gr, sg, early, late)

def qacc(tau, ct, T): return V_ACC + ((tau * 2 + ct) * 2 + T) * 4
def oacc(dt, ct): return V_ACC + (((dt >> 1) * 2 + ct) * 2 + (dt & 1)) * 4
def sbuf(j, ct, T): return V_S + (j & 1) * 16 + (ct * 2 + T) * 4
def pbuf(j, ct): return V_P + (j & 1) * 8 + ct * 4

def build_qkv(with_q, sched):
    sq = Seq()
    streams = []
    hreads = []
    qdone = {}
    if with_q:
        for sg in range(14):
            slot = sg % 3
            hid = [('h', sg, ct) for ct in range(2)]
            for tau in range(8):
                for T in range(2):
                    def rd(reg, tau=tau, T=T):
                        return [f"ds_read_b64_tr_b16 a[{reg+2*I}:{reg+2*I+1}], " + rd_addr(slot, V_LQ, V_LQ2, 8448 * I + 64 * tau + 8 * T) for I in range(2)]
                    def mk(ct, tau=tau, T=T):
                        def fn(reg):
                            c = qacc(tau, ct, T); hb = A_H + (sg & 1) * 8 + ct * 4
                            return (f"{MF} {v(c,4)}, {a(reg,4)}, {a(hb,4)}, " + ("0" if sg == 0 else v(c, 4)), [hid[ct]])
                        return fn
                    f = sq.frag(sg, rd, [mk(0), mk(1)])
                    if sg == 13: qdone[(tau, T)] = f + 1
            for ct in range(2):
                o = Op(f"ds_read_b128 {a(A_H+(sg&1)*8+ct*4,4)}, v{V_LH} offset:{ct*15232+sg*1088}", kind='lds', id=hid[ct])
                o.sg = sg; hreads.append(o)
    sfirst = {}; sdone = {}; pfirst = {}; pdone = {}; quse = {}
    def s_frag(sg, j, i, upper):
        T, ks = i >> 3, i & 7
        slot = sg % 3
        def rd(reg): return [f"ds_read_b128 {a(reg,4)}, " + rd_addr(slot, V_LK, V_LK2, (16896 if upper else 0) + 512 * T + 64 * ks)]
        def mk(ct):
            def fn(reg):
                d = sbuf(j, ct, T)
                cin = v(d, 4) if ks else ("0" if (j < 2 and with_q) else v(V_NEG + 4 * ct, 4))
                return (f"{MF} {v(d,4)}, {a(reg,4)}, {a(A_Q+(ks*2+ct)*4,4)}, {cin}", [])
            return fn
        f = sq.frag(sg, rd, [mk(0), mk(1)])
        sfirst.setdefault(j, f); sdone[(j, T)] = f + 1; quse.setdefault(ks, f)
    def v_frag(sg, j, dt, upper):
        slot = sg % 3
        def rd(reg): return [f"ds_read_b64_tr_b16 a[{reg+2*I}:{reg+2*I+1}], " + rd_addr(slot, V_LV, V_LV2, (16896 if upper else 0) + 512 * I + 32 * dt) for I in range(2)]
        def mk(ct):
            def fn(reg):
                c = oacc(dt, ct)
                return (f"{MF} {v(c,4)}, {a(reg,4)}, {v(pbuf(j,ct),4)}, " + ("0" if j == 0 else v(c, 4)), [])
            return fn
        f = sq.frag(sg, rd, [mk(0), mk(1)])
        pfirst.setdefault(j, f); pdone[j] = f + 1
    def sums(j):
        for ct in range(2):
            c = A_L + 4 * ct
            sq.plain(f"{MF} {a(c,4)}, {a(A_ONE,4)}, {v(pbuf(j,ct),4)}, " + ("0" if j == 0 else a(c, 4)))
    for n in range(16):
        sg = 14 + n
        if n == 0:
            for i in range(16): s_frag(sg, 0, i, False)
            for i in range(16): s_frag(sg, 1, i, True)
        elif n < 15:
            for i in range(16):
                s_frag(sg, n + 1, i, False); v_frag(sg, n - 1, i, True)
                if i == 7: sums(n - 1)
        else:
            for i in range(16):
                v_frag(sg, 14, i, True)
                if i == 7: sums(14)
            v14_last = sq.reads[-1]
            for i in range(16):
                v_frag(sg, 15, i, False)
                if i == 7: sums(15)
    stages = list(range(0 if with_q else 14, 30))
    B = sq.finish(stages)
    M = len(sq.mf)
    bars = [Op("s_barrier", early=B[sg], late=B[sg], kind='bar', tag=sg) for sg in stages]
    mid = pfirst[15] - 1
    bars.append(Op("s_barrier", early=mid, late=mid, kind='bar', need={v14_last.id}))
    streams.append(bars)
    streams.append(sq.reads)
    if with_q:
        for o in hreads:
            sg = o.sg
            o.early = max(B[sg], (sq.stage_first[sg - 1] - 1) if sg >= 1 else -1)
            o.late = sq.stage_first[sg] - 1; o.target = o.early
        streams.append(hreads)
    dm = []
    for i, sg in enumerate(stages):
        lo = B[sg]; hi = (B[stages[i+1]] - 1) if i + 1 < len(stages) else M - 1
        ops = attn_dma(sg + 2, lo, hi)
        spread(ops, lo + 1, max(lo + 1, hi - 6))
        dm += ops
    streams.append(dm)
    if with_q:
        cv = []
        for tau in range(8):
            for ct in range(2):
                e = qdone[(tau, 1)] + 3; l = quse[tau] - 2
                t0 = V_T + ((tau * 2 + ct) & 3) * 4
                for T in range(2):
                    c = qacc(tau, ct, T)
                    cv.append(Op(f"v_cvt_pk_bf16_f32 v{t0+2*T}, v{c}, v{c+1}", early=e, late=l))
                    cv.append(Op(f"v_cvt_pk_bf16_f32 v{t0+2*T+1}, v{c+2}, v{c+3}", early=e, late=l))
                for r in range(4):
                    cv.append(Op(f"v_accvgpr_write_b32 a{A_Q+(tau*2+ct)*4+r}, v{t0+r}", early=e, late=l))
        streams.append(cv)
    sm = []
    for j in range(16):
        dl = pfirst[j] - 2
        if j + 2 in sfirst: dl = min(dl, sfirst[j + 2] - 2)
        ops = []
        e0 = sdone[(j, 0)] + 3; e1 = sdone[(j, 1)] + 3
        pe = pdone.get(j - 2, -1)
        if j == 0 and with_q:
            for ct in range(2):
                r = [sbuf(0, ct, 0) + i for i in range(8)]; m = 48 + ct
                ops += [Op(f"v_max3_f32 v{m}, v{r[0]}, v{r[1]}, v{r[2]}", early=e1),
                        Op(f"v_max3_f32 v{m}, v{m}, v{r[3]}, v{r[4]}", early=e1),
                        Op(f"v_max3_f32 v{m}, v{m}, v{r[5]}, v{r[6]}", early=e1),
                        Op(f"v_max_f32 v{m}, v{m}, v{r[7]}", early=e1)]
            for sw in ("v_permlane16_swap_b32", "v_permlane32_swap_b32"):
                for ct in range(2): ops.append(Op(f"v_mov_b32 v{50+ct}, v{48+ct}", early=e1))
                for ct in range(2): ops.append(Op(f"{sw} v{48+ct}, v{50+ct}", early=e1))
                for ct in range(2): ops.append(Op(f"v_max_f32 v{48+ct}, v{48+ct}, v{50+ct}", early=e1))
            for ct in range(2):
                for r in range(4): ops.append(Op(f"v_sub_f32 v{V_NEG+4*ct+r}, {f32(-PBIAS)}, v{48+ct}", early=e1))
            e0 = e1
        for T in range(2):
            e = e0 if T == 0 else e1
            for ct in range(2):
                b = sbuf(j, ct, T)
                if j < 2 and with_q:
                    for r in range(4): ops.append(Op(f"v_add_f32 v{b+r}, v{V_NEG+4*ct}, v{b+r}", early=e))
                for r in range(4): ops.append(Op(f"v_exp_f32 v{b+r}, v{b+r}", early=e))
                for h in range(2): ops.append(Op(f"v_cvt_pk_bf16_f32 v{pbuf(j,ct)+2*T+h}, v{b+2*h}, v{b+2*h+1}", early=max(e, pe)))
        for o in ops: o.late = dl
        lo = max(e0, (pfirst[j - 1] - 2) if j >= 1 else -1)
        spread(ops, lo, dl - 1)
        sm += ops
    streams.append(sm)
    return sched.run(sq.mf, streams)

def build_o(sched):
    sq = Seq()
    ACC, X, PK = 64, 80, 96
    xdone = {}; buse = {}
    for gam in range(7):
        for eta in range(2):
            sg = 30 + 2 * gam + eta; slot = sg % 3
            for ks in range(8):
                for T in range(2):
                    def rd(reg, ks=ks, T=T):
                        return [f"ds_read_b64_tr_b16 a[{reg+2*I}:{reg+2*I+1}], " + rd_addr(slot, V_LO, V_LO2, 8448 * (ks >> 1) + 512 * (ks & 1) + 256 * I + 8 * T) for I in range(2)]
                    def mk(ct, ks=ks, T=T):
                        def fn(reg):
                            c = ACC + (ct * 2 + T) * 4
                            d = X + (ct * 2 + T) * 4 if (eta == 1 and ks == 7) else c
                            bi = (eta * 8 + ks) * 2 + ct
                            return (f"{MF} {v(d,4)}, {a(reg,4)}, {a(A_OB+4*bi,4)}, " + ("0" if (eta == 0 and ks == 0) else v(c, 4)), [('ob', bi)] if gam == 0 else [])
                        return fn
                    f = sq.frag(sg, rd, [mk(0), mk(1)])
                    if gam == 0:
                        for ct in range(2): buse.setdefault((eta * 8 + ks) * 2 + ct, f)
            xdone[gam] = len(sq.mf) - 1
    stages = list(range(30, 44))
    B = sq.finish(stages)
    M = len(sq.mf)
    streams = []
    bars = [Op("s_barrier", early=B[sg], late=B[sg], kind='bar', tag=sg) for sg in stages[1:]]
    xb = 6
    bars.insert(0, Op("s_barrier", early=xb, late=xb, kind='bar', need={('ob', 0), ('ob', 1), ('ob', 2)}))
    streams.append(bars)
    obr = []
    for bi in range(32):
        eta, rest = bi >> 4, bi & 15
        o = Op(f"ds_read_b128 {a(A_OB+4*bi,4)}, v{V_EXR} offset:{eta*32768+rest*1024}", kind='lds', id=('ob', bi), late=buse[bi] - 1, target=max(-1, buse[bi] - 1 - CFG['lag'] - 2))
        obr.append(o)
    streams.append(obr)
    streams.append(sq.reads)
    dm = []
    dmend = {}
    for i, sg in enumerate(stages[:-2]):
        lo = B[sg] if i else xb; hi = B[stages[i+1]] - 1
        ops = attn_dma(sg + 2, lo, hi)
        spread(ops, lo + 1, max(lo + 1, hi - 8))
        for o in ops: o.late = hi - 2
        dm += ops
    streams.append(dm)
    st = []
    tailops = []
    for gam in range(7):
        ops = []
        e = xdone[gam] + 3
        for ct in range(2):
            for T in range(2):
                x = X + (ct * 2 + T) * 4
                for h in range(2): ops.append(Op(f"v_cvt_pk_bf16_f32 v{PK+ct*4+2*T+h}, v{x+2*h}, v{x+2*h+1}", early=e))
        so = []
        for ct in range(2):
            so.append([f"s_add_u32 s80, s{S_ST}, {gam*1024+ct*114688}", f"buffer_store_dwordx4 {v(PK+4*ct,4)}, v{V_ST}, s[{S_WS}:{S_WS+3}], s80 offen {CFG['st_flags']}"])
        if gam < 6:
            nb = B[30 + 2 * gam + 3]
            spread(ops, e, nb - 3)
            for o in ops: o.late = nb - 2
            for t in so: ops.append(Op(t, early=nb - 1, late=nb - 1, kind='vmem', tag='st'))
            st += ops
        else:
            tailops = [o.text[0] for o in ops] + so[0] + so[1]
    streams.append(st)
    return sched.run(sq.mf, streams) + tailops

def gen_attn():
    k = Asm(); name = "k_attn_kernel"
    header(k, name)
    k("s_cmp_ge_u32 s2, 256"); k("s_cbranch_scc1 L_attn_end")
    load_args(k)
    wave_ids(k)
    k("s_and_b32 s62, s2, 7"); k("s_lshr_b32 s63, s2, 3")
    k("v_lshlrev_b32 v26, 4, v0")
    k(f"v_mov_b32 v27, {OOB}"); k("v_cmp_gt_u32 vcc, 56, v0")
    for q in range(4): k(f"v_add_u32 v{V_DQ[q]}, {8192*q-DS[q]}, v26")
    k("v_cndmask_b32 v27, v27, v26, vcc")
    k("v_lshlrev_b32 v28, 5, v0")
    k(f"s_mul_i32 s{S_M8}, s64, 8448"); k(f"s_mul_i32 s{S_M4}, s64, 4224")
    k("s_lshl_b32 s3, s66, 2"); k("s_lshl_b32 s4, s65, 4"); k("s_add_u32 s3, s3, s4"); k(f"s_lshl_b32 s{S_QB}, s3, 13")
    k(f"s_lshl_b32 s{S_KB}, s64, 11")
    k(f"s_mul_i32 s{S_OB}, s64, {64*896}")
    k("s_lshl_b32 s3, s63, 2"); k("s_add_u32 s3, s3, s64"); k(f"s_mul_i32 s67, s3, {16*896}")
    k("s_lshl_b32 s4, s62, 10"); k("s_lshl_b32 s5, s62, 20"); k(f"s_mul_i32 s6, s62, 458752")
    k(f"s_mov_b32 s{S_MODE}, 0")
    k("s_waitcnt lgkmcnt(0)")
    srd(k, S_X, 'x', 2048 * 896)
    for r in range(16):
        if r and r % 4 == 0: k(f"s_add_u32 s67, s67, 3584")
        off = f" offset:{(r&3)*896}" if r & 3 else ""
        k(f"buffer_load_dwordx4 {v(64+4*r,4)}, v27, s[{S_X}:{S_X+3}], s67 offen{off}")
    srd(k, S_WS, 'ws', WS_END)
    k(f"buffer_load_dwordx4 v[32:35], v28, s[{S_WS}:{S_WS+3}], 0 offen")
    k(f"buffer_load_dwordx4 v[36:39], v28, s[{S_WS}:{S_WS+3}], 0 offen offset:16")
    k(f"buffer_load_dwordx4 v[40:43], v28, s[{S_WS}:{S_WS+3}], 0 offen offset:1792")
    k(f"buffer_load_dwordx4 v[44:47], v28, s[{S_WS}:{S_WS+3}], 0 offen offset:1808")
    srd(k, S_WQ, 'wq', 447 * 8192 + 1024, add_sgpr=4)
    for sg in (0, 1):
        for o in attn_dma(sg, 0, 0): k.extend(o.text)
    vm0 = ['x'] * 20 + [0] * 8 + [1] * 8
    srd(k, S_K, 'k', 262144 + 2048, add_sgpr=5, add_imm=1536 * 512 - 2048)
    srd(k, S_V, 'v', 262144 + 2048, add_sgpr=5, add_imm=1536 * 512 - 2048)
    srd(k, S_WO, 'wo', 458752 + 512, add_sgpr=6, add_imm=-512)
    addr_kappa(k, 29, 30, 31)
    k("v_and_b32 v30, 3, v0")
    k("v_lshl_add_u32 v29, v30, 4, v29")
    k("v_lshrrev_b32 v31, 5, v0")
    k(f"v_mul_u32_u24 v{V_LQ}, 16896, v31"); k(f"v_add_u32 v{V_LQ}, v{V_LQ}, v29")
    k("s_lshl_b32 s3, s65, 9"); k(f"v_add_u32 v{V_LQ}, s3, v{V_LQ}")
    k(f"v_lshl_add_u32 v{V_LO}, v31, 7, v29")
    k("s_lshl_b32 s3, s65, 6"); k(f"v_add_u32 v{V_LO}, s3, v{V_LO}")
    k("v_and_b32 v48, 15, v0"); k("v_lshrrev_b32 v49, 4, v0")
    k(f"v_mul_u32_u24 v{V_LK}, 1056, v48"); k(f"v_lshl_add_u32 v{V_LK}, v49, 4, v{V_LK}")
    k("v_lshrrev_b32 v50, 2, v0"); k(f"v_mul_u32_u24 v{V_LV}, 1056, v50"); k(f"v_lshl_add_u32 v{V_LV}, v30, 3, v{V_LV}")
    for x in (V_LQ, V_LK, V_LV, V_LO): k(f"v_add_u32 v{x+1}, {2*SLOT}, v{x}")
    k(f"v_mul_u32_u24 v{V_LH}, 272, v49"); k(f"v_lshl_add_u32 v{V_LH}, v48, 4, v{V_LH}")
    k(f"s_mul_i32 s3, s66, {2*15232}"); k(f"s_add_u32 s3, s3, {HB}"); k(f"v_add_u32 v{V_LH}, s3, v{V_LH}")
    k("s_lshl_b32 s3, s64, 14"); k(f"s_add_u32 s3, s3, {EX}"); k(f"v_add_u32 v{V_EXW}, s3, v26")
    k("s_lshl_b32 s3, s66, 14"); k(f"s_add_u32 s3, s3, {EX}"); k(f"v_add_u32 v{V_EXR}, s3, v26")
    k("v_and_b32 v51, 31, v0"); k("v_lshlrev_b32 v51, 4, v51"); k("v_lshl_add_u32 v51, v31, 13, v51")
    for q in range(4): k(f"v_add_u32 v{V_DKV[q]}, {2048-544*q}, v51")
    k("v_lshrrev_b32 v51, 3, v0"); k("v_mul_u32_u24 v51, 7168, v51"); k("v_and_b32 v52, 7, v0"); k("v_lshl_add_u32 v51, v52, 4, v51")
    for q in range(4): k(f"v_add_u32 v{V_DO[q]}, {512+896*q-DS[q]}, v51")
    k("v_bfe_u32 v51, v0, 3, 1"); k(f"v_mul_u32_u24 v{V_ST}, 57344, v51")
    k(f"v_lshl_add_u32 v{V_ST}, v49, 7, v{V_ST}"); k(f"v_lshl_add_u32 v{V_ST}, v52, 4, v{V_ST}")
    k("s_lshl_b32 s3, s63, 1"); k("s_add_u32 s3, s3, s66"); k(f"s_mul_i32 s{S_ST}, s3, {4*57344}")
    k("s_mul_i32 s3, s62, 7168"); k(f"s_add_u32 s{S_ST}, s{S_ST}, s3")
    k("s_lshl_b32 s3, s65, 9"); k(f"s_add_u32 s{S_ST}, s{S_ST}, s3"); k(f"s_add_u32 s{S_ST}, s{S_ST}, {WS_P1}")
    k("v_mul_u32_u24 v53, 272, v0"); k("s_mul_i32 s3, s64, 15232"); k(f"s_add_u32 s3, s3, {HB}"); k("v_add_u32 v53, s3, v53")
    k("v_mov_b32 v54, 0x3f803f80")
    for r in range(4): k(f"v_accvgpr_write_b32 a{A_ONE+r}, v54")
    k(f"v_mov_b32 v55, {f32(1e-5)}")
    k("s_mov_b32 s68, 0xffff0000"); k(f"s_mov_b32 s69, {f32(-1.0/448)}"); k(f"s_mov_b32 s70, {f32(1.0/448)}")
    X56 = ["s_mov_b32 exec_hi, 0x00ffffff"]; XALL = ["s_mov_b32 exec_hi, -1"]
    k.extend(X56)
    for r in range(16):
        if r % 4 == 0: k(f"s_waitcnt vmcnt({36-4-r})")
        T = 128 + 8 * r; w = 64 + 4 * r
        for j in range(4):
            k(f"v_lshlrev_b32 v{T+2*j}, 16, v{w+j}"); k(f"v_and_b32 v{T+2*j+1}, s68, v{w+j}")
        k(f"v_pk_add_f32 v[56:57], {v(T,2)}, {v(T+2,2)}"); k(f"v_pk_add_f32 v[58:59], {v(T+4,2)}, {v(T+6,2)}")
        k("v_pk_add_f32 v[56:57], v[56:57], v[58:59]"); k(f"v_add_f32 v{w}, v56, v57")
    def reduce(off):
        k.extend(XALL)
        for sh in (1, 2, 4, 8):
            for r in range(16): x = 64 + 4 * r + off; k(f"v_add_f32_dpp v{x}, v{x}, v{x} row_ror:{sh} row_mask:0xf bank_mask:0xf")
        for bc, rm in ((15, 0xa), (31, 0xc)):
            for r in range(16): x = 64 + 4 * r + off; k(f"v_add_f32_dpp v{x}, v{x}, v{x} row_bcast:{bc} row_mask:{hex(rm)} bank_mask:0xf")
    reduce(0)
    for r in range(16): k(f"v_mul_f32 v{64+4*r}, s69, v{64+4*r}")
    for r in range(16): k(f"v_readlane_b32 s{36+r}, v{64+4*r}, 63")
    k.extend(X56)
    def sp(r): return f"s[{36+(r&~1)}:{37+(r&~1)}]", f"op_sel:[0,{r&1}] op_sel_hi:[1,{r&1}]"
    for r in range(16):
        T = 128 + 8 * r; p, m = sp(r)
        for j in range(4): k(f"v_pk_add_f32 {v(T+2*j,2)}, {v(T+2*j,2)}, {p} {m}")
        k(f"v_pk_mul_f32 v[56:57], {v(T,2)}, {v(T,2)}")
        for j in range(1, 4): k(f"v_pk_fma_f32 v[56:57], {v(T+2*j,2)}, {v(T+2*j,2)}, v[56:57]")
        k(f"v_add_f32 v{65+4*r}, v56, v57")
    reduce(1)
    for r in range(16): k(f"v_fma_f32 v{65+4*r}, v{65+4*r}, s70, v55")
    for r in range(16): k(f"v_rsq_f32 v{65+4*r}, v{65+4*r}")
    for r in range(16): k(f"v_readlane_b32 s{36+r}, v{65+4*r}, 63")
    k.extend(X56)
    for r in range(16):
        T = 128 + 8 * r; p, m = sp(r)
        for j in range(4): k(f"v_pk_mul_f32 {v(T+2*j,2)}, {v(T+2*j,2)}, {p} {m}")
    k("s_waitcnt vmcnt(16)")
    for r in range(16):
        T = 128 + 8 * r; w = 64 + 4 * r
        for j in range(4): k(f"v_pk_fma_f32 {v(T+2*j,2)}, {v(T+2*j,2)}, {v(40+2*j,2)}, {v(32+2*j,2)}")
        for j in range(4): k(f"v_cvt_pk_bf16_f32 v{w+j}, v{T+2*j}, v{T+2*j+1}")
        k(f"ds_write_b128 v53, {v(w,4)} offset:{16*r}")
    k.extend(XALL)
    k("s_waitcnt lgkmcnt(0)")
    stamp(k, 0)
    sc = Sched(vm=vm0, lag=CFG['lag']); sc.vm_done = 20
    k.extend(build_qkv(True, sc))
    print("attn qkv over-slots", sc.over, file=sys.stderr)
    k.label("L_attn_exch")
    stamp(k, 1)
    k("s_nop 7")
    for ct in range(2): k(f"v_accvgpr_read_b32 v{48+2*ct}, a{A_L+4*ct}")
    k(f"s_mov_b32 s3, {f32(LTHR)}")
    k("v_cmp_nle_f32 vcc, v48, s3"); k("v_cmp_nle_f32 s[4:5], v50, s3")
    for ct in range(2): k(f"v_rcp_f32 v{48+2*ct}, v{48+2*ct}")
    k("s_or_b64 s[4:5], s[4:5], vcc"); k("s_cselect_b32 s3, 1, 0")
    k("s_lshl_b32 s4, s64, 2"); k(f"s_add_u32 s4, s4, {FLAG}")
    k("v_mov_b32 v52, s4"); k("v_mov_b32 v53, s3"); k("ds_write_b32 v52, v53")
    for ks in range(8):
        for ct in range(2):
            c = oacc(2 * ks, ct); t0 = 64 + ((ks * 2 + ct) & 7) * 4
            for j in range(4): k(f"v_pk_mul_f32 {v(c+2*j,2)}, {v(c+2*j,2)}, {v(48+2*ct,2)} op_sel:[0,0] op_sel_hi:[1,0]")
            for j in range(4): k(f"v_cvt_pk_bf16_f32 v{t0+j}, v{c+2*j}, v{c+2*j+1}")
            k(f"ds_write_b128 v{V_EXW}, {v(t0,4)} offset:{(ks*2+ct)*1024}")
    n = sc.vwait(30)
    k(f"v_mov_b32 v52, {FLAG}")
    k("s_waitcnt " + (f"vmcnt({n}) " if n is not None else "") + "lgkmcnt(0)"); k("s_barrier")
    k("ds_read_b128 v[56:59], v52")
    k("s_waitcnt lgkmcnt(0)")
    k("v_or3_b32 v56, v56, v57, v58"); k("v_or_b32 v56, v56, v59")
    k("v_readfirstlane_b32 s3, v56")
    k(f"s_andn2_b32 s3, s3, s{S_MODE}")
    k("s_cbranch_scc1 L_attn_slow")
    stamp(k, 2)
    k.extend(build_o(sc))
    print("attn o over-slots", sc.over, file=sys.stderr)
    stamp(k, 3)
    if CFG['stamps']: dump_stamps(k, 4)
    k.label("L_attn_end")
    k("s_endpgm")
    k.label("L_attn_fast_end")
    k.label("L_attn_slow")
    k(f"s_mov_b32 s{S_MODE}, 1")
    k("s_waitcnt vmcnt(0)"); k("s_barrier")
    for sg in (14, 15):
        for o in attn_dma(sg, 0, 0): k.extend(o.text)
    k("v_and_b32 v48, 15, v0"); k("v_lshrrev_b32 v49, 4, v0")
    k("v_lshlrev_b32 v48, 9, v48"); k("v_lshl_add_u32 v48, v49, 4, v48"); k("v_add_u32 v48, 2048, v48")
    k("v_mov_b32 v50, 0xff800000"); k("v_mov_b32 v51, 0xff800000")
    k("s_mov_b32 s3, 0")
    k.label("L_attn_maxloop")
    for ks in range(8): k(f"buffer_load_dwordx4 {v(128+4*ks,4)}, v48, s[{S_K}:{S_K+3}], s3 offen offset:{64*ks}")
    k("s_waitcnt vmcnt(0)")
    for ks in range(8):
        for ct in range(2):
            k(f"{MF} {v(64+4*ct,4)}, {v(128+4*ks,4)}, {a(A_Q+(ks*2+ct)*4,4)}, " + (v(64 + 4 * ct, 4) if ks else "0"))
    k("s_nop 7")
    for ct in range(2):
        k(f"v_max3_f32 v{50+ct}, v{50+ct}, v{64+4*ct}, v{65+4*ct}"); k(f"v_max3_f32 v{50+ct}, v{50+ct}, v{66+4*ct}, v{67+4*ct}")
    k("s_add_u32 s3, s3, 8192"); k("s_cmp_lt_u32 s3, 262144"); k("s_cbranch_scc1 L_attn_maxloop")
    for sw in ("v_permlane16_swap_b32", "v_permlane32_swap_b32"):
        for ct in range(2): k(f"v_mov_b32 v{52+ct}, v{50+ct}")
        for ct in range(2): k(f"{sw} v{50+ct}, v{52+ct}")
        for ct in range(2): k(f"v_max_f32 v{50+ct}, v{50+ct}, v{52+ct}")
    for ct in range(2):
        for r in range(4): k(f"v_sub_f32 v{V_NEG+4*ct+r}, {f32(-PBIAS)}, v{50+ct}")
    sc2 = Sched(vm=[], lag=CFG['lag'])
    k.extend(build_qkv(False, sc2))
    k("s_waitcnt vmcnt(0)")
    k("s_branch L_attn_exch")
    return k, descriptor(name, 512, 256)

def dump_stamps(k, n):
    k("s_waitcnt vmcnt(0)")
    k("s_lshl_b32 s3, s2, 2"); k("s_add_u32 s3, s3, s64"); k("s_lshl_b32 s3, s3, 6"); k("s_add_u32 s3, s3, 0x1f00000")
    k("v_mov_b32 v1, 0")
    for i in range(n):
        k(f"v_mov_b32 v2, s{84+i}")
        k(f"buffer_store_dword v2, v1, s[28:31], s3 offen offset:{4*i}")
    k("s_waitcnt vmcnt(0)")

def xcd_map(k):
    k("s_and_b32 s3, s2, 7"); k("s_lshr_b32 s4, s2, 6"); k("s_lshl_b32 s3, s3, 2"); k("s_add_u32 s63, s3, s4")
    k("s_bfe_u32 s62, s2, 0x30003")

def gen_red(final):
    k = Asm(); name = "k_red2_kernel" if final else "k_red1_kernel"; L = "L_red2" if final else "L_red1"
    header(k, name)
    k("s_cmp_ge_u32 s2, 256"); k(f"s_cbranch_scc1 {L}_end")
    load_args(k)
    xcd_map(k)
    k("v_lshlrev_b32 v1, 4, v0")
    k("v_and_b32 v2, 7, v0"); k("v_lshrrev_b32 v3, 3, v0")
    k("v_mul_u32_u24 v4, 896, v2"); k("v_lshl_add_u32 v4, v3, 4, v4")
    k("v_lshlrev_b32 v5, 5, v3")
    k("s_lshl_b32 s3, s63, 3"); k("s_add_u32 s3, s3, s62")
    k("s_mul_i32 s4, s3, 57344"); k(f"s_add_u32 s4, s4, {WS_P2 if final else WS_P1}")
    k("s_mul_i32 s5, s3, 7168")
    k(f"s_add_u32 s6, s5, {WS_X1}")
    k("s_mov_b32 s68, 0xffff0000")
    k("s_waitcnt lgkmcnt(0)")
    srd(k, 8, 'ws', WS_END)
    for src in range(8):
        k(f"buffer_load_dwordx4 {v(16+4*src,4)}, v1, s[8:11], s4 offen")
        if src < 7: k("s_add_u32 s4, s4, 7168")
    if final:
        k(f"buffer_load_dwordx4 v[48:51], v4, s[8:11], s6 offen")
        srd(k, 12, 'out', 2048 * 896)
        secs = [5]
    else:
        srd(k, 12, 'x', 2048 * 896)
        k(f"buffer_load_dwordx4 v[48:51], v4, s[12:15], s5 offen")
        secs = [2, 3, 4]
    for i, sec in enumerate(secs):
        k(f"s_mov_b32 s7, {sec*1792}")
        k(f"buffer_load_dwordx4 {v(52+8*i,4)}, v5, s[8:11], s7 offen")
        k(f"buffer_load_dwordx4 {v(56+8*i,4)}, v5, s[8:11], s7 offen offset:16")
    nl = 9 + 2 * len(secs)
    A = 80
    for src in range(8):
        k(f"s_waitcnt vmcnt({nl-1-src})")
        D = A if src == 0 else 88
        for j in range(4):
            k(f"v_lshlrev_b32 v{D+2*j}, 16, v{16+4*src+j}"); k(f"v_and_b32 v{D+2*j+1}, s68, v{16+4*src+j}")
        if src:
            for j in range(4): k(f"v_pk_add_f32 {v(A+2*j,2)}, {v(A+2*j,2)}, {v(88+2*j,2)}")
    k(f"s_waitcnt vmcnt({nl-11})")
    for j in range(4):
        k(f"v_lshlrev_b32 v{88+2*j}, 16, v{48+j}"); k(f"v_and_b32 v{89+2*j}, s68, v{48+j}")
    for j in range(4): k(f"v_pk_fma_f32 {v(A+2*j,2)}, {v(A+2*j,2)}, {v(52+2*j,2)}, {v(88+2*j,2)}")
    for j in range(4): k(f"v_cvt_pk_bf16_f32 v{16+j}, v{A+2*j}, v{A+2*j+1}")
    if final:
        k("buffer_store_dwordx4 v[16:19], v4, s[12:15], s5 offen")
    else:
        k("buffer_store_dwordx4 v[16:19], v4, s[8:11], s6 offen")
        for j in range(4):
            k(f"v_lshlrev_b32 v{A+2*j}, 16, v{16+j}"); k(f"v_and_b32 v{A+2*j+1}, s68, v{16+j}")
        k("v_lshlrev_b32 v6, 7, v2"); k("v_lshrrev_b32 v7, 4, v0"); k("v_lshl_add_u32 v7, v7, 2, v6")
        def allred(base):
            k("v_add_f32_dpp v20, v20, v20 row_ror:8 row_mask:0xf bank_mask:0xf")
            k(f"ds_write_b32 v7, v20 offset:{base}")
            k("s_waitcnt lgkmcnt(0)"); k("s_barrier")
            for i in range(7): k(f"ds_read_b128 {v(20+4*i,4)}, v6 offset:{base+16*i}")
            k("s_waitcnt lgkmcnt(0)")
            for (x, y) in ((20, 34), (22, 36), (24, 38), (26, 40), (28, 42), (30, 44), (32, 46), (20, 28), (22, 30), (24, 32), (20, 24), (22, 26), (20, 22)):
                k(f"v_pk_add_f32 {v(x,2)}, {v(x,2)}, {v(y,2)}")
            k("v_add_f32 v20, v20, v21")
        k(f"v_pk_add_f32 v[20:21], {v(A,2)}, {v(A+2,2)}"); k(f"v_pk_add_f32 v[22:23], {v(A+4,2)}, {v(A+6,2)}")
        k("v_pk_add_f32 v[20:21], v[20:21], v[22:23]"); k("v_add_f32 v20, v20, v21")
        allred(0)
        k(f"v_mul_f32 v20, {f32(-1.0/448)}, v20")
        for j in range(4): k(f"v_pk_add_f32 {v(A+2*j,2)}, {v(A+2*j,2)}, v[20:21] op_sel:[0,0] op_sel_hi:[1,0]")
        k(f"v_pk_mul_f32 v[20:21], {v(A,2)}, {v(A,2)}")
        for j in range(1, 4): k(f"v_pk_fma_f32 v[20:21], {v(A+2*j,2)}, {v(A+2*j,2)}, v[20:21]")
        k("v_add_f32 v20, v20, v21")
        allred(1024)
        k(f"v_mov_b32 v21, {f32(1e-5)}")
        k(f"v_fmac_f32 v21, {f32(1.0/448)}, v20")
        k("v_rsq_f32 v20, v21")
        k("v_lshlrev_b32 v8, 8, v3"); k("v_lshl_add_u32 v8, v2, 4, v8")
        k("s_lshr_b32 s4, s3, 1"); k("s_mul_i32 s4, s4, 14336"); k("s_and_b32 s7, s62, 1"); k("s_lshl_b32 s7, s7, 7")
        k("s_add_u32 s4, s4, s7"); k(f"s_add_u32 s4, s4, {WS_H2}")
        k("s_waitcnt vmcnt(1)")
        for j in range(4): k(f"v_pk_mul_f32 {v(A+2*j,2)}, {v(A+2*j,2)}, v[20:21] op_sel:[0,0] op_sel_hi:[1,0]")
        for j in range(4): k(f"v_pk_fma_f32 {v(A+2*j,2)}, {v(A+2*j,2)}, {v(68+2*j,2)}, {v(60+2*j,2)}")
        for j in range(4): k(f"v_cvt_pk_bf16_f32 v{24+j}, v{A+2*j}, v{A+2*j+1}")
        k("buffer_store_dwordx4 v[24:27], v8, s[8:11], s4 offen")
    k.label(f"{L}_end")
    k("s_endpgm")
    return k, descriptor(name, 96, 96)

F_L1, F_L12, F_L2, F_L22, F_EXW, F_EXR, F_ST = range(2, 9)
F_D1 = [14, 15, 16, 17]; F_D2 = [18, 19, 20, 21]
S_W1, S_W2 = 8, 12
S_1B, S_2B = 74, 75
FA_H = 64
FA_Z = 176
FEX = HB

def ffn_dma(sg, early, late):
    slot = sg % 3
    if sg < 7:
        o = sg * 64 * 3584
        gr = [(S_M8, 0, S_W1, S_1B, o, F_D1, DP, S_T0), (S_M8, 4224, S_W1, S_1B, o + 8 * 3584, F_D1, DP, S_T1)]
    else:
        o = 128 * (sg - 7)
        gr = [(S_M8, 0, S_W2, S_2B, o, F_D2, DS, S_T0), (S_M8, 4224, S_W2, S_2B, o + 4 * 896, F_D2, DS, S_T1)]
    return dma_ops(slot, gr, sg, early, late)

def build_ffn1(sched):
    sq = Seq(); ZA = 128
    for sg in range(7):
        slot = sg % 3
        for ks in range(2):
            for ft in range(7):
                def rd(reg, ks=ks, ft=ft):
                    return [f"ds_read_b64_tr_b16 a[{reg+2*I}:{reg+2*I+1}], " + rd_addr(slot, F_L1, F_L12, 8448 * I + 448 * ks + 32 * ft) for I in range(2)]
                def mk(ct, ks=ks, ft=ft):
                    def fn(reg):
                        c = ZA + (ft * 2 + ct) * 4; kk = 2 * sg + ks
                        return (f"{MF} {v(c,4)}, {a(reg,4)}, {a(FA_H+(kk*2+ct)*4,4)}, " + ("0" if kk == 0 else v(c, 4)), [], ('h', kk))
                    return fn
                sq.frag(sg, rd, [mk(0), mk(1)])
    stages = list(range(7))
    B = sq.finish(stages); M = len(sq.mf)
    streams = [[Op("s_barrier", early=B[sg], late=B[sg], kind='bar', tag=sg) for sg in stages], sq.reads]
    dm = []
    for i, sg in enumerate(stages):
        lo = B[sg]; hi = (B[stages[i+1]] - 1) if i + 1 < len(stages) else M - 1
        ops = ffn_dma(sg + 2, lo, hi); spread(ops, lo + 1, max(lo + 1, hi - 6)); dm += ops
    streams.append(dm)
    return sched.run(sq.mf, streams)

def build_ffn2(sched):
    sq = Seq(); ACC, X, PK = 64, 80, 96
    xdone = {}; buse = {}
    for gam in range(7):
        sg = 7 + gam; slot = sg % 3
        for n in range(7):
            for T in range(2):
                def rd(reg, n=n, T=T):
                    return [f"ds_read_b64_tr_b16 a[{reg+2*I}:{reg+2*I+1}], " + rd_addr(slot, F_L2, F_L22, 8448 * (n >> 1) + 512 * (n & 1) + 256 * I + 8 * T) for I in range(2)]
                def mk(ct, n=n, T=T):
                    def fn(reg):
                        c = ACC + (ct * 2 + T) * 4
                        d = X + (ct * 2 + T) * 4 if n == 6 else c
                        bi = n * 2 + ct
                        return (f"{MF} {v(d,4)}, {a(reg,4)}, {a(FA_Z+4*bi,4)}, " + ("0" if n == 0 else v(c, 4)), [('zb', bi)] if gam == 0 else [])
                    return fn
                f = sq.frag(sg, rd, [mk(0), mk(1)])
                if gam == 0:
                    for ct in range(2): buse.setdefault(n * 2 + ct, f)
        xdone[gam] = len(sq.mf) - 1
    stages = list(range(7, 14))
    B = sq.finish(stages); M = len(sq.mf)
    streams = [[Op("s_barrier", early=B[sg], late=B[sg], kind='bar', tag=sg) for sg in stages[1:]]]
    streams.append([Op(f"ds_read_b128 {a(FA_Z+4*bi,4)}, v{F_EXR} offset:{bi*1024}", kind='lds', id=('zb', bi), late=buse[bi] - 1, target=max(-1, buse[bi] - 3 - CFG['lag'])) for bi in range(14)])
    streams.append(sq.reads)
    dm = []
    for i, sg in enumerate(stages[:-2]):
        lo = B[sg]; hi = B[stages[i+1]] - 1
        ops = ffn_dma(sg + 2, lo, hi); spread(ops, lo + 1, max(lo + 1, hi - 8))
        for o in ops: o.late = hi - 2
        dm += ops
    streams.append(dm)
    st = []; tailops = []
    for gam in range(7):
        ops = []; e = xdone[gam] + 3
        for ct in range(2):
            for T in range(2):
                x = X + (ct * 2 + T) * 4
                for h in range(2): ops.append(Op(f"v_cvt_pk_bf16_f32 v{PK+ct*4+2*T+h}, v{x+2*h}, v{x+2*h+1}", early=e))
        so = [[f"s_add_u32 s80, s{S_ST}, {gam*1024+ct*114688}", f"buffer_store_dwordx4 {v(PK+4*ct,4)}, v{F_ST}, s[{S_WS}:{S_WS+3}], s80 offen {CFG.get('st2_flags','')}"] for ct in range(2)]
        if gam < 6:
            nb = B[7 + gam + 2] if gam < 5 else M - 6
            spread(ops, e, nb - 3)
            for o in ops: o.late = nb - 2
            for t in so: ops.append(Op(t, early=nb - 1, late=nb - 1, kind='vmem', tag='st'))
            st += ops
        else:
            tailops = [o.text[0] for o in ops] + so[0] + so[1]
    streams.append(st)
    return sched.run(sq.mf, streams) + tailops

def gen_ffn():
    k = Asm(); name = "k_ffn_kernel"
    header(k, name)
    k("s_cmp_ge_u32 s2, 256"); k("s_cbranch_scc1 L_ffn_end")
    load_args(k)
    wave_ids(k)
    xcd_map(k)
    k("v_lshlrev_b32 v26, 4, v0")
    k(f"v_add_u32 v27, {32*3584-28*16}, v26"); k("v_cmp_gt_u32 vcc, 28, v0"); k(f"v_mov_b32 v28, {OOB}")
    k("v_cndmask_b32 v27, v27, v26, vcc"); k("v_cmp_gt_u32 vcc, 56, v0"); k("s_nop 1"); k("v_cndmask_b32 v27, v28, v27, vcc")
    for q in range(4): k(f"v_add_u32 v{F_D1[q]}, {3584*q-DP[q]}, v27")
    k(f"s_mul_i32 s{S_M8}, s64, 8448")
    k("s_lshl_b32 s3, s66, 2"); k("s_lshl_b32 s4, s65, 4"); k("s_add_u32 s3, s3, s4"); k(f"s_mul_i32 s{S_1B}, s3, 3584")
    k("s_mul_i32 s4, s62, 448"); k(f"s_add_u32 s{S_1B}, s{S_1B}, s4")
    k(f"s_mul_i32 s{S_2B}, s64, {32*896}")
    k(f"s_mul_i32 s5, s62, {224*896}")
    k("s_lshl_b32 s3, s63, 1"); k("s_add_u32 s3, s3, s66"); k(f"s_mul_i32 s67, s3, {2*14336}"); k(f"s_add_u32 s67, s67, {WS_H2}")
    k(f"s_add_u32 s68, s67, 14336")
    k("s_waitcnt lgkmcnt(0)")
    srd(k, S_W1, 'w1', 448 * 3584)
    srd(k, S_WS, 'ws', WS_END)
    vm0 = []
    def hload(kk):
        for ct in range(2):
            k(f"buffer_load_dwordx4 {a(FA_H+(kk*2+ct)*4,4)}, v26, s[{S_WS}:{S_WS+3}], s{67+ct} offen offset:{(kk&3)*1024}")
            vm0.append(('h', kk))
        if kk & 3 == 3: k("s_add_u32 s67, s67, 4096"); k("s_add_u32 s68, s68, 4096")
    for o in ffn_dma(0, 0, 0): k.extend(o.text)
    vm0 += [0] * 8
    for kk in range(4): hload(kk)
    for o in ffn_dma(1, 0, 0): k.extend(o.text)
    vm0 += [1] * 8
    for kk in range(4, 14): hload(kk)
    srd(k, S_W2, 'w2', 224 * 896 + 512, add_sgpr=5, add_imm=-512)
    addr_kappa(k, 29, 30, 31)
    k("v_and_b32 v30, 3, v0"); k("v_lshl_add_u32 v29, v30, 4, v29"); k("v_lshrrev_b32 v31, 5, v0")
    k(f"v_lshl_add_u32 v{F_L2}, v31, 7, v29"); k("s_lshl_b32 s3, s65, 6"); k(f"v_add_u32 v{F_L2}, s3, v{F_L2}")
    k("v_bfe_u32 v32, v0, 2, 3"); k("v_lshl_add_u32 v32, v31, 4, v32"); k(f"v_mul_u32_u24 v{F_L1}, 1056, v32")
    k(f"v_lshl_add_u32 v{F_L1}, v30, 3, v{F_L1}"); k("s_mul_i32 s3, s65, 224"); k(f"v_add_u32 v{F_L1}, s3, v{F_L1}")
    for x in (F_L1, F_L2): k(f"v_add_u32 v{x+1}, {2*SLOT}, v{x}")
    k("s_mul_i32 s3, s66, 14336"); k(f"s_add_u32 s3, s3, {FEX}"); k(f"v_add_u32 v{F_EXR}, s3, v26")
    k("s_lshl_b32 s3, s65, 3"); k(f"v_add_u32 v{F_EXW}, s3, v{F_EXR}")
    k("v_bfe_u32 v32, v0, 4, 1"); k("v_mul_u32_u24 v33, 112, v32")
    k("v_lshl_add_u32 v33, v31, 4, v33"); k("v_bfe_u32 v32, v0, 3, 1"); k("v_lshl_add_u32 v33, v32, 3, v33")
    k("v_mul_u32_u24 v33, 896, v33"); k("v_and_b32 v34, 7, v0"); k("v_lshl_add_u32 v33, v34, 4, v33")
    k("s_cmp_eq_u32 s64, 3"); k("s_cselect_b32 s3, 32, 64"); k("v_cmp_gt_u32 vcc, s3, v0"); k("s_nop 1")
    k("v_cndmask_b32 v33, v28, v33, vcc")
    for q in range(4): k(f"v_add_u32 v{F_D2[q]}, {512+896*q-DS[q]}, v33")
    k(f"v_mul_u32_u24 v{F_ST}, 57344, v32"); k("v_lshrrev_b32 v35, 4, v0")
    k(f"v_lshl_add_u32 v{F_ST}, v35, 7, v{F_ST}"); k(f"v_lshl_add_u32 v{F_ST}, v34, 4, v{F_ST}")
    k("s_lshl_b32 s3, s63, 1"); k("s_add_u32 s3, s3, s66"); k(f"s_mul_i32 s{S_ST}, s3, {4*57344}")
    k("s_mul_i32 s3, s62, 7168"); k(f"s_add_u32 s{S_ST}, s{S_ST}, s3")
    k("s_lshl_b32 s3, s65, 9"); k(f"s_add_u32 s{S_ST}, s{S_ST}, s3"); k(f"s_add_u32 s{S_ST}, s{S_ST}, {WS_P2}")
    sc = Sched(vm=vm0, lag=CFG['lag'])
    k.extend(build_ffn1(sc))
    print("ffn1 over-slots", sc.over, file=sys.stderr)
    for ft in range(7):
        for ct in range(2):
            c = 128 + (ft * 2 + ct) * 4; t0 = 64 + ((ft * 2 + ct) & 7) * 2
            for h in range(2): k(f"v_cvt_pk_bf16_f32 v{t0+h}, v{c+2*h}, v{c+2*h+1}")
            for h in range(2): k(f"v_pk_max_i16 v{t0+h}, v{t0+h}, 0")
            k(f"ds_write_b64 v{F_EXW}, {v(t0,2)} offset:{(ft*2+ct)*1024}")
    n = sc.vwait(7)
    k("s_waitcnt " + (f"vmcnt({n}) " if n is not None else "") + "lgkmcnt(0)"); k("s_barrier")
    k.extend(build_ffn2(sc))
    print("ffn2 over-slots", sc.over, file=sys.stderr)
    k.label("L_ffn_end")
    k("s_endpgm")
    return k, descriptor(name, 512, 256)

def main(path):
    ref = open('adaLN_cond__sliding_block_cached__dense_activation_relu__prompt.s.ref').read().split("\n")
    head = [l for l in ref if l.startswith(";") and "@launch" not in l and "Override" not in l and "grid=ceil" not in l][:14]
    out = head + [
        "; @launch kernel=k_mod_kernel grid=(256,1,1) block=(256,1,1) lds=2048",
        "; @launch kernel=k_attn_kernel grid=(256,1,1) block=(256,1,1) lds=163840",
        "; @launch kernel=k_red1_kernel grid=(256,1,1) block=(448,1,1) lds=2048",
        "; @launch kernel=k_ffn_kernel grid=(256,1,1) block=(256,1,1) lds=131072",
        "; @launch kernel=k_red2_kernel grid=(256,1,1) block=(448,1,1) lds=0",
        '.amdgcn_target "amdgcn-amd-amdhsa--gfx950"']
    body = "\n".join(out) + "\n"
    descs = ""
    for g in (gen_mod, gen_attn, lambda: gen_red(False), gen_ffn, lambda: gen_red(True)):
        k, d = g()
        k.lines, added = fix_hazards(k.lines)
        print("hazard nops added:", added, " instrs:", sum(is_ins(l) for l in k.lines), file=sys.stderr)
        body += k.text()
        descs += ".p2align 6\n" + d
    body += '.section .rodata,"a"\n' + descs
    open(path, "w").write(body)

if __name__ == "__main__":
    for arg in sys.argv[2:]:
        kk, vv = arg.split("=")
        CFG[kk] = eval(vv) if vv[:1].isdigit() or vv in ("True", "False") else vv
    main(sys.argv[1])
```
